```python
import torch

def _softmax(x, axis=-1):
    return torch.softmax(x, dim=axis)
def _gelu(x):
    return torch.nn.functional.gelu(x, approximate="tanh")
def _silu(x):
    return torch.nn.functional.silu(x)
def _sigmoid(x):
    return torch.sigmoid(x)
def _layernorm(x, axis=-1, eps=1e-5):
    m = x.mean(dim=axis, keepdim=True)
    v = x.var(dim=axis, keepdim=True, unbiased=False)
    return (x - m) / torch.sqrt(v + eps)
def _scatter_add(tgt, idx, src, axis=0):
    return tgt.clone().index_add_(axis, idx, src)
def _segment_sum(src, seg, n):
    out = torch.zeros((n,) + src.shape[1:], dtype=src.dtype)
    return out.index_add_(0, seg, src)
def _pad(x, pw):
    flat = tuple(v for pair in reversed(pw) for v in pair)
    return torch.nn.functional.pad(x, flat)

kernel_name = 'standalone__batchnorm__prompt'

def setup_inputs():

    _w = (lambda a: (lambda t: t.to(torch.bfloat16) if t.is_floating_point() else t)(torch.as_tensor(a)))
    B, S, C = 4, 2048, 448
    K = 3
    return {
        "x": _w((lambda *s: torch.randn(*s, dtype=torch.bfloat16) * 0.05)(B, S, C)),
        "w": _w((lambda *s: torch.randn(*s, dtype=torch.bfloat16) * 0.05)(K, C, C) * (1.0 / (K * C) ** 0.5)),
        "mean": _w((lambda *s: torch.randn(*s, dtype=torch.bfloat16) * 0.05)(C) * 0.1),
        "var": _w(torch.abs((lambda *s: torch.randn(*s, dtype=torch.bfloat16) * 0.05)(C)) + 0.5),
        "g": _w((lambda *s: torch.randn(*s, dtype=torch.bfloat16) * 0.05)(C) + 1.0),
        "b": _w((lambda *s: torch.randn(*s, dtype=torch.bfloat16) * 0.05)(C) * 0.1),
    }

def reference(x, w, mean, var, g, b):
    K = 3
    P = K // 2
    S = x.shape[1]
    xp = _pad(x, ((0, 0), (P, P), (0, 0)))
    y = sum(torch.einsum('bsc,cd->bsd', xp[:, k:k + S, :], w[k]) for k in range(K))
    inv_std = 1.0 / torch.sqrt(var + 1e-5)
    y = (y - mean) * (g * inv_std) + b
    return _silu(y)
```

```python
import sys, struct

def f2u(f): return struct.unpack('<I', struct.pack('<f', f))[0]

class Gen:
    def __init__(self, stamps=False):
        self.L = []
        self.stamps = stamps
    def e(self, s): self.L.append("    " + s)
    def lab(self, s): self.L.append(s + ":")
    def c(self, s): self.L.append("    ; " + s)

NAME = "standalone__batchnorm__prompt"
WSLOT = 12288; NWS = 5
XBUF = 258*128; NXB = 3
WBASE = 0
XBASE = WBASE + WSLOT*NWS
PBASE = XBASE + XBUF*NXB
LDS_TOTAL = PBASE + 512
NPH = 14

def gen(stamps=False):
    g = Gen(stamps)
    e = g.e
    hdr = open('cdna_kernels/%s.s.ref' % NAME).read().split('\n')
    out = []
    for ln in hdr:
        if ln.startswith('; @launch'):
            out.append('; @launch grid=(224,1,1) block=(512,1,1) lds=%d' % LDS_TOTAL)
        elif ln.startswith(';'):
            out.append(ln)
        else:
            break
    out += ['.amdgcn_target "amdgcn-amd-amdhsa--gfx950"', '.text', '.globl %s_kernel' % NAME, '.p2align 8',
            '.type %s_kernel,@function' % NAME, '%s_kernel:' % NAME]

    def stamp(idx):
        if stamps:
            e("s_memrealtime s[%d:%d]" % (60+2*idx, 61+2*idx))

    e("s_load_dwordx16 s[4:19], s[0:1], 0")
    if stamps:
        e("s_load_dwordx2 s[20:21], s[0:1], 64")
    stamp(0)
    e("s_cmp_ge_u32 s2, 224")
    e("s_cbranch_scc1 L_end")
    e("v_lshrrev_b32 v1, 6, v0")
    e("v_and_b32 v0, 63, v0")
    e("v_readfirstlane_b32 s3, v1")
    e("s_and_b32 s22, s2, 7")
    e("s_lshr_b32 s23, s2, 3")
    e("s_mul_i32 s36, s23, 37")
    e("s_lshr_b32 s36, s36, 8")
    e("s_mul_i32 s37, s36, 7")
    e("s_sub_u32 s37, s23, s37")
    e("s_lshl_b32 s22, s22, 2")
    e("s_add_u32 s36, s36, s22")
    e("s_mul_i32 s38, s36, 229376")
    e("s_lshl_b32 s39, s37, 7")
    e("s_cmp_ge_u32 s3, 4")
    e("s_cbranch_scc1 L_loader")

    ACC = 64
    XF = [128, 164]; WF = [152, 188]
    AX = 200; AW = 212; VO = 213
    PA = 16; PB = 32
    e("s_lshr_b32 s40, s3, 1")
    e("s_and_b32 s41, s3, 1")
    e("v_and_b32 v1, 31, v0")
    e("v_lshrrev_b32 v2, 5, v0")
    e("s_lshl_b32 s42, s40, 5")
    e("v_add_u32 v1, s42, v1")
    e("v_lshlrev_b32 v3, 7, v1")
    e("v_add_u32 v3, %d, v3" % XBASE)
    for si, sh in enumerate((-1, 0, 1)):
        e("v_add_u32 v4, %d, v1" % sh)
        e("v_bfe_u32 v4, v4, 1, 3")
        e("v_xor_b32 v4, v4, v2")
        e("v_lshlrev_b32 v4, 4, v4")
        for ks in range(4):
            e("v_xor_b32 v5, %d, v4" % (ks*32))
            e("v_add_u32 v%d, v5, v3" % (AX + si*4 + ks))
    e("v_bfe_u32 v4, v0, 2, 2")
    e("v_lshl_add_u32 v5, v2, 3, v4")
    e("v_lshlrev_b32 v5, 7, v5")
    e("v_lshrrev_b32 v4, 1, v4")
    e("v_xor_b32 v4, s41, v4")
    e("v_lshl_add_u32 v5, v4, 6, v5")
    e("v_bfe_u32 v4, v0, 4, 1")
    e("v_lshl_add_u32 v5, v4, 5, v5")
    e("v_and_b32 v4, 1, v0")
    e("v_lshl_add_u32 v5, v4, 4, v5")
    e("v_bfe_u32 v4, v0, 1, 1")
    e("v_lshl_add_u32 v%d, v4, 3, v5" % AW)
    e("v_mul_u32_u24 v4, 3584, v1")
    e("v_lshl_add_u32 v4, v2, 4, v4")
    e("s_lshl_b32 s42, s41, 6")
    e("s_add_u32 s42, s42, s39")
    e("s_add_u32 s42, s42, s38")
    e("v_add_u32 v%d, s42, v4" % VO)
    e("v_lshlrev_b32 v6, 5, v2")
    e("s_lshl_b32 s42, s41, 7")
    e("s_add_u32 s42, s42, %d" % PBASE)
    e("v_add_u32 v6, s42, v6")
    e("s_waitcnt lgkmcnt(0)")
    e("s_mov_b32 s32, s16")
    e("s_and_b32 s33, s17, 0xffff")
    e("s_mov_b32 s34, %d" % (4*2048*448*2))
    e("s_mov_b32 s35, 0x20000")
    e("s_mov_b32 s44, 0x%08x" % f2u(-1.4426950408889634))
    e("s_mov_b32 s45, s44")
    stamp(1)

    def reads(k):
        st = k & 1; ks = k & 3; n = k >> 1; slot = n % NWS; kp = k & 1
        x = XF[st]; w = WF[st]
        def xr(f):
            d = x + (f+1)*4
            if f == -1: a, off = AX + 0 + ks, 0
            elif f == 4: a, off = AX + 8 + ks, 194*128
            else: a, off = AX + 4 + ks, (1 + 64*(3-f))*128
            return "ds_read_b128 v[%d:%d], v%d offset:%d" % (d, d+3, a, off)
        def wr(tap, hh):
            d = w + tap*4 + hh*2
            off = WBASE + slot*WSLOT + tap*4096 + kp*2048 + hh*512
            return "ds_read_b64_tr_b16 v[%d:%d], v%d offset:%d" % (d, d+1, AW, off)
        return [[xr(-1)], [wr(0,0), wr(0,1)], [xr(0)], [xr(1)], [xr(2)], [wr(1,0), wr(1,1)], [xr(3)], [wr(2,0), wr(2,1)], [xr(4)]]

    def mfmas(k):
        st = k & 1
        x = XF[st]; w = WF[st]
        r = []
        for tap in range(3):
            for t in range(4):
                f = t + tap - 1
                a = ACC + t*16
                srcc = "0" if (k == 0 and tap == 0) else "v[%d:%d]" % (a, a+15)
                r.append("v_mfma_f32_32x32x16_bf16 v[%d:%d], v[%d:%d], v[%d:%d], %s" %
                         (a, a+15, w+tap*4, w+tap*4+3, x+(f+1)*4, x+(f+1)*4+3, srcc))
        return r

    e("s_barrier")
    stamp(2)
    for grp in reads(0):
        for r in grp: e(r)
    NK = 28
    for k in range(NK):
        g.c("K-step %d" % k)
        m = mfmas(k)
        fill = [[] for _ in range(12)]
        if k+1 < NK:
            rd = reads(k+1)
            start = 0
            if k & 1:
                fill[0].append("s_barrier")
            if (k+1) % 4 == 0:
                nb = ((k+1) >> 2) % NXB
                delta = XBUF if nb != 0 else -(NXB-1)*XBUF
                for si in range(3):
                    fill[0].append("v_add_u32 v%d, %d, v%d" % (AX+si*4, delta & 0xffffffff, AX+si*4))
                for ks in range(1, 4):
                    for si in range(3):
                        fill[8+ks].append("v_add_u32 v%d, %d, v%d" % (AX+si*4+ks, delta & 0xffffffff, AX+si*4+ks))
            for i, grp in enumerate(rd):
                fill[i] += grp
        else:
            for i in range(4):
                u = i >> 1; hf = i & 1
                fill[i].append("ds_read_b128 v[%d:%d], v6 offset:%d" % (PA+i*4, PA+i*4+3, u*64 + hf*16))
                fill[i].append("ds_read_b128 v[%d:%d], v6 offset:%d" % (PB+i*4, PB+i*4+3, 256 + u*64 + hf*16))
        e("s_waitcnt lgkmcnt(0)")
        for i in range(12):
            e(m[i])
            for f in fill[i]: e(f)
    stamp(3)
    e("s_waitcnt lgkmcnt(0)")
    e("s_nop 7")
    T0 = 128
    for t in range(4):
        a = ACC + t*16
        if t == 3:
            e("s_nop 7")
        z = T0 + (t & 1)*40
        ex = z + 16
        o = z + 32
        for p in range(8):
            e("v_pk_fma_f32 v[%d:%d], v[%d:%d], v[%d:%d], v[%d:%d]" % (z+2*p, z+2*p+1, a+2*p, a+2*p+1, PA+2*p, PA+2*p+1, PB+2*p, PB+2*p+1))
        for i in range(16):
            e("v_exp_f32 v%d, v%d" % (ex+i, z+i))
        e("s_nop 0")
        for p in range(8):
            e("v_pk_fma_f32 v[%d:%d], v[%d:%d], s[44:45], s[44:45]" % (ex+2*p, ex+2*p+1, ex+2*p, ex+2*p+1))
        for i in range(16):
            e("v_rcp_f32 v%d, v%d" % (ex+i, ex+i))
        e("s_nop 0")
        for p in range(8):
            e("v_pk_mul_f32 v[%d:%d], v[%d:%d], v[%d:%d]" % (z+2*p, z+2*p+1, z+2*p, z+2*p+1, ex+2*p, ex+2*p+1))
        for p in range(8):
            e("v_cvt_pk_bf16_f32 v%d, v%d, v%d" % (o+p, z+2*p, z+2*p+1))
        for u in range(2):
            e("buffer_store_dwordx4 v[%d:%d], v%d, s[32:35], 0 offen offset:%d" % (o+4*u, o+4*u+3, VO, t*896 + u*32))
    stamp(4)
    if stamps:
        e("s_waitcnt vmcnt(0)")
        stamp(5)
        e("s_branch L_stamp_out")
    e("s_endpgm")

    g.lab("L_loader")
    e("s_sub_u32 s40, s3, 4")
    e("s_sub_u32 s41, 3, s40")
    VX0, VX1, VH, VW = 8, 9, 10, 11
    e("v_lshrrev_b32 v1, 3, v0")
    e("v_lshrrev_b32 v2, 4, v0")
    e("v_and_b32 v3, 7, v0")
    e("v_xor_b32 v4, v3, v2")
    e("v_lshlrev_b32 v4, 4, v4")
    e("v_mul_u32_u24 v5, 3584, v1")
    e("v_add_u32 v4, v4, v5")
    e("s_mul_i32 s42, s41, 896")
    e("s_add_u32 s42, s42, s38")
    e("v_add_u32 v%d, s42, v4" % VX0)
    e("v_xor_b32 v%d, 64, v%d" % (VX1, VX0))
    e("v_and_b32 v4, 1, v2")
    e("v_lshlrev_b32 v4, 2, v4")
    e("v_xor_b32 v4, v4, v3")
    e("v_lshlrev_b32 v4, 4, v4")
    e("v_mul_u32_u24 v5, 896, v1")
    e("v_add_u32 v4, v4, v5")
    e("s_mul_i32 s42, s40, 7168")
    e("s_add_u32 s42, s42, s39")
    e("v_add_u32 v%d, s42, v4" % VW)
    e("s_and_b32 s42, s40, 1")
    e("s_lshl_b32 s42, s42, 2")
    e("v_add_u32 v4, s42, v0")
    e("s_and_b32 s43, s36, 7")
    e("s_cmp_lt_u32 s40, 2")
    e("s_cselect_b32 s46, 7, 0")
    e("s_cselect_b32 s47, 0, 7")
    e("s_cselect_b32 s48, 0, %d" % (257*896))
    e("s_cselect_b32 s49, 0, %d" % (257*128))
    e("s_add_u32 s48, s48, s38")
    e("s_sub_u32 s48, s48, 896")
    e("s_cmp_eq_u32 s43, s47")
    e("s_cselect_b32 s48, 0x80000000, s48")
    e("v_xor_b32 v4, s46, v4")
    e("v_lshlrev_b32 v4, 4, v4")
    e("v_add_u32 v%d, s48, v4" % VH)
    e("s_lshl_b32 s42, s42, 4")
    e("s_add_u32 s49, s49, s42")
    e("s_add_u32 s49, s49, %d" % XBASE)
    e("s_lshl_b32 s50, s40, 13")
    e("s_add_u32 s50, s50, %d" % (XBASE + 128))
    e("s_lshl_b32 s51, s40, 10")
    e("s_add_u32 s51, s51, %d" % WBASE)
    e("v_lshlrev_b32 v12, 1, v0")
    e("v_add_u32 v12, s39, v12")
    e("s_waitcnt lgkmcnt(0)")
    e("s_mov_b32 s24, s4")
    e("s_and_b32 s25, s5, 0xffff")
    e("s_mov_b32 s26, %d" % (4*2048*448*2))
    e("s_mov_b32 s27, 0x20000")
    e("s_mov_b32 s28, s6")
    e("s_and_b32 s29, s7, 0xffff")
    e("s_mov_b32 s30, %d" % (3*448*448*2))
    e("s_mov_b32 s31, 0x20000")
    stamp(1)
    e("s_cmp_lg_u32 s40, 0")
    e("s_cbranch_scc1 L_noparam1")
    e("global_load_ushort v16, v12, s[8:9]")
    e("global_load_ushort v17, v12, s[10:11]")
    e("global_load_ushort v18, v12, s[12:13]")
    e("global_load_ushort v19, v12, s[14:15]")
    g.lab("L_noparam1")

    issued = []
    def issue_x(s):
        b = s % NXB
        for q in range(8):
            e("s_add_u32 m0, s50, %d" % (b*XBUF + q*1024))
            e("s_mov_b32 s52, %d" % (q*28672 + s*128))
            e("buffer_load_dwordx4 v%d, s[24:27], s52 offen lds" % (VX1 if q & 1 else VX0))
            issued.append(('x', s))
        e("s_add_u32 m0, s49, %d" % (b*XBUF))
        e("s_mov_b32 s52, %d" % (s*128))
        e("s_mov_b64 exec, 15")
        e("buffer_load_dwordx4 v%d, s[24:27], s52 offen lds" % VH)
        e("s_mov_b64 exec, -1")
        issued.append(('x', s))
    def issue_w(n):
        sl = n % NWS
        for tap in range(3):
            e("s_add_u32 m0, s51, %d" % (sl*WSLOT + tap*4096))
            e("s_mov_b32 s52, %d" % (tap*401408 + n*32*896))
            e("buffer_load_dwordx4 v%d, s[28:31], s52 offen lds" % VW)
            issued.append(('w', n))
    issue_w(0); issue_x(0); issue_w(1); issue_x(1); issue_w(2); issue_w(3); issue_x(2); issue_w(4)
    e("s_cmp_lg_u32 s40, 0")
    e("s_cbranch_scc1 L_noparam2")
    e("s_waitcnt vmcnt(%d)" % len(issued))
    for r in (16, 17, 18, 19):
        e("v_lshlrev_b32 v%d, 16, v%d" % (r, r))
    def rnd(r):
        e("v_cvt_pk_bf16_f32 v%d, v%d, v%d" % (r, r, r))
        e("v_lshlrev_b32 v%d, 16, v%d" % (r, r))
    e("v_add_f32 v17, 0x%08x, v17" % f2u(1e-5)); rnd(17)
    e("v_sqrt_f32 v17, v17"); e("s_nop 0"); rnd(17)
    e("v_rcp_f32 v17, v17"); e("s_nop 0"); rnd(17)
    e("v_mul_f32 v17, v18, v17"); rnd(17)
    e("v_fma_f32 v19, -v16, v17, v19")
    e("v_mul_f32 v17, 0x%08x, v17" % f2u(-1.4426950408889634))
    e("v_mul_f32 v19, 0x%08x, v19" % f2u(-1.4426950408889634))
    e("v_lshlrev_b32 v13, 2, v0")
    e("v_add_u32 v13, %d, v13" % PBASE)
    e("ds_write_b32 v13, v17")
    e("ds_write_b32 v13, v19 offset:256")
    e("s_waitcnt lgkmcnt(0)")
    g.lab("L_noparam2")
    for n in range(NPH):
        need = [i for i, t in enumerate(issued) if t == ('w', n) or t == ('x', n >> 1)]
        N = len(issued) - 1 - max(need)
        e("s_waitcnt vmcnt(%d)" % N)
        if n < 4: stamp(2+n)
        e("s_barrier")
        if n >= 1:
            if n + 4 < NPH: issue_w(n+4)
            if (n-1) & 1 and ((n-1) >> 1) + 3 < 7: issue_x(((n-1) >> 1) + 3)
    if stamps:
        g.lab("L_stamp_out")
        e("s_waitcnt lgkmcnt(0)")
        e("s_lshl_b32 s42, s2, 3")
        e("s_add_u32 s42, s42, s3")
        e("s_lshl_b32 s42, s42, 6")
        e("v_mov_b32 v1, s42")
        for i in range(6):
            e("v_mov_b32 v%d, s%d" % (2+i, 60+2*i))
        e("s_getreg_b32 s43, hwreg(HW_REG_XCC_ID)")
        e("v_mov_b32 v8, s43")
        e("s_getreg_b32 s43, hwreg(HW_REG_HW_ID)")
        e("v_mov_b32 v9, s43")
        e("s_mov_b64 exec, 1")
        e("global_store_dwordx4 v1, v[2:5], s[20:21]")
        e("global_store_dwordx4 v1, v[6:9], s[20:21] offset:16")
    g.lab("L_end")
    e("s_endpgm")
    out += g.L
    out += ['.section .rodata,"a"', '.p2align 6', '.amdhsa_kernel %s_kernel' % NAME,
            '  .amdhsa_next_free_vgpr 256', '  .amdhsa_next_free_sgpr 102', '  .amdhsa_accum_offset 256',
            '  .amdhsa_group_segment_fixed_size 0', '  .amdhsa_kernarg_size 72', '  .amdhsa_user_sgpr_count 2',
            '  .amdhsa_user_sgpr_kernarg_segment_ptr 1', '  .amdhsa_system_sgpr_workgroup_id_x 1',
            '.end_amdhsa_kernel', '']
    return '\n'.join(out)

if __name__ == '__main__':
    stamps = '--stamps' in sys.argv
    path = [a for a in sys.argv[1:] if not a.startswith('--')][0]
    open(path, 'w').write(gen(stamps))
```

```python
import sys, struct

def f2u(f): return struct.unpack('<I', struct.pack('<f', f))[0]

NAME = "standalone__batchnorm__prompt"
WSLOT = 12288; NWS = 5
XBUF = 258*128; NXB = 3
WBASE = 0
XBASE = WBASE + WSLOT*NWS
PBASE = XBASE + XBUF*NXB
LDS_TOTAL = PBASE + 512
NPH = 14

def gen(opt):
    L = []
    def e(s): L.append("    " + s)
    def lab(s): L.append(s + ":")
    stamps = opt.get('stamps', False)
    KIND = 's_memrealtime' if opt.get('rt') else 's_memtime'
    hdr = open('cdna_kernels/%s.s.ref' % NAME).read().split('\n')
    out = []
    for ln in hdr:
        if ln.startswith('; @launch'):
            out.append('; @launch grid=(224,1,1) block=(512,1,1) lds=%d' % LDS_TOTAL)
        elif ln.startswith(';'):
            out.append(ln)
        else:
            break
    out += ['.amdgcn_target "amdgcn-amd-amdhsa--gfx950"', '.text', '.globl %s_kernel' % NAME, '.p2align 8',
            '.type %s_kernel,@function' % NAME, '%s_kernel:' % NAME]
    def stamp_s(idx, kind="s_memrealtime"):
        return "%s s[%d:%d]" % (kind, 60+2*idx, 61+2*idx)
    def stamp(idx, kind="s_memrealtime"):
        if stamps: e(stamp_s(idx, kind))

    e("s_load_dwordx16 s[4:19], s[0:1], 0")
    if stamps:
        e("s_load_dwordx2 s[20:21], s[0:1], 64")
    stamp(0)
    e("s_cmp_ge_u32 s2, 224")
    e("s_cbranch_scc1 L_end")
    e("v_lshrrev_b32 v1, 6, v0")
    e("v_and_b32 v0, 63, v0")
    e("v_readfirstlane_b32 s3, v1")
    e("s_and_b32 s22, s2, 7")
    e("s_lshr_b32 s23, s2, 3")
    e("s_mul_i32 s36, s23, 37")
    e("s_lshr_b32 s36, s36, 8")
    e("s_mul_i32 s37, s36, 7")
    e("s_sub_u32 s37, s23, s37")
    e("s_lshl_b32 s22, s22, 2")
    e("s_add_u32 s36, s36, s22")
    e("s_mul_i32 s38, s36, 229376")
    e("s_lshl_b32 s39, s37, 7")
    e("s_cmp_ge_u32 s3, 4")
    e("s_cbranch_scc1 L_loader")

    ACC = 48
    XF = [112, 176]; WF = [152, 216]
    AX = 240; AW = 246; VO = 248; VP = 249
    PA = 16; PB = 24
    acc_pfx = 'v'
    e("s_lshr_b32 s40, s3, 1")
    e("s_and_b32 s41, s3, 1")
    e("v_and_b32 v1, 15, v0")
    e("v_lshrrev_b32 v2, 4, v0")
    e("s_lshl_b32 s42, s40, 4")
    e("v_add_u32 v1, s42, v1")
    e("v_lshlrev_b32 v3, 7, v1")
    e("v_add_u32 v3, %d, v3" % XBASE)
    for si, sh in enumerate((-1, 0, 1)):
        e("v_add_u32 v4, %d, v1" % sh)
        e("v_and_b32 v4, 6, v4")
        e("v_xor_b32 v4, v4, v2")
        e("v_lshlrev_b32 v4, 4, v4")
        e("v_add_u32 v%d, v4, v3" % (AX + si*2))
        e("v_xor_b32 v%d, 64, v%d" % (AX + si*2 + 1, AX + si*2))
    e("v_bfe_u32 v4, v0, 2, 2")
    e("v_lshl_add_u32 v5, v2, 3, v4")
    e("v_lshlrev_b32 v5, 7, v5")
    e("v_bfe_u32 v4, v0, 3, 2")
    e("s_lshl_b32 s42, s41, 1")
    e("v_xor_b32 v4, s42, v4")
    e("v_lshl_add_u32 v5, v4, 5, v5")
    e("v_and_b32 v4, 3, v0")
    e("v_lshl_add_u32 v%d, v4, 3, v5" % AW)
    e("v_xor_b32 v%d, 32, v%d" % (AW+1, AW))
    e("v_mul_u32_u24 v4, 7168, v1")
    e("v_and_b32 v5, 1, v2")
    e("v_lshl_add_u32 v4, v5, 5, v4")
    e("v_lshrrev_b32 v5, 1, v2")
    e("v_lshl_add_u32 v4, v5, 4, v4")
    e("s_lshl_b32 s42, s41, 6")
    e("s_add_u32 s42, s42, s39")
    e("s_add_u32 s42, s42, s38")
    e("v_add_u32 v%d, s42, v4" % VO)
    e("v_lshlrev_b32 v6, 4, v2")
    e("s_lshl_b32 s42, s41, 7")
    e("s_add_u32 s42, s42, %d" % PBASE)
    e("v_add_u32 v%d, s42, v6" % VP)
    e("s_waitcnt lgkmcnt(0)")
    e("s_mov_b32 s32, s16")
    e("s_and_b32 s33, s17, 0xffff")
    e("s_mov_b32 s34, %d" % (4*2048*448*2))
    e("s_mov_b32 s35, 0x20000")
    e("s_mov_b32 s44, 0x%08x" % f2u(-1.4426950408889634))
    e("s_mov_b32 s45, s44")
    e("s_mov_b32 s46, %d" % (4*896))
    stamp(1)

    def xr(n, f):
        st = n & 1; ks = n & 1
        d = XF[st] + (f+1)*4
        if f == -1: a, off = AX + 0 + ks, 0
        elif f == 8: a, off = AX + 4 + ks, 226*128
        else: a, off = AX + 2 + ks, (1 + 32*(7-f))*128
        return "ds_read_b128 v[%d:%d], v%d offset:%d" % (d, d+3, a, off)
    def wr(n, tap, u, hh):
        st = n & 1; slot = n % NWS
        d = WF[st] + (tap*2+u)*4 + hh*2
        off = WBASE + slot*WSLOT + tap*4096 + hh*512
        return "ds_read_b64_tr_b16 v[%d:%d], v%d offset:%d" % (d, d+1, AW+u, off)
    def reads(n):
        r = []
        for tap in range(3):
            for u in range(2):
                r += [wr(n, tap, u, 0), wr(n, tap, u, 1)]
        for f in range(-1, 9):
            r.append(xr(n, f))
        return r
    def mf(n, tap, t, u, first=False):
        st = n & 1
        f = t + tap - 1
        a = ACC + t*8 + u*4
        w = WF[st] + (tap*2+u)*4; x = XF[st] + (f+1)*4
        srcc = "0" if first else "v[%d:%d]" % (a, a+3)
        return "v_mfma_f32_16x16x32_bf16 v[%d:%d], v[%d:%d], v[%d:%d], %s" % (a, a+3, w, w+3, x, x+3, srcc)
    order = opt.get('order', 'tap_u_t')
    def mfmas(n):
        r = []
        if order == 'tap_u_t':
            for tap in range(3):
                for u in range(2):
                    for t in range(8): r.append(mf(n, tap, t, u, n == 0 and tap == 0))
        elif order == 't_u_tap':
            for t in range(8):
                for u in range(2):
                    for tap in range(3): r.append(mf(n, tap, t, u, n == 0 and tap == 0))
        elif order == 'f':
            seen = set()
            for f in range(-1, 9):
                for tap in range(3):
                    t = f - tap + 1
                    if 0 <= t < 8:
                        for u in range(2):
                            r.append(mf(n, tap, t, u, n == 0 and (t, u) not in seen)); seen.add((t, u))
        return r

    e("s_barrier")
    stamp(2)
    stamp(6, KIND)
    for r in reads(0): e(r)
    for n in range(NPH):
        L.append("    ; phase %d" % n)
        m = mfmas(n)
        fill = [[] for _ in range(48)]
        if n+1 < NPH:
            fill[1].append("s_barrier")
            if stamps: fill[1].append(stamp_s(6+n+1, KIND))
            if (n+1) % 2 == 0:
                nb = ((n+1) >> 1) % NXB
                delta = XBUF if nb != 0 else -(NXB-1)*XBUF
                for si in range(3):
                    fill[0].append("v_add_u32 v%d, %d, v%d" % (AX+si*2, delta & 0xffffffff, AX+si*2))
                    fill[40+si].append("v_add_u32 v%d, %d, v%d" % (AX+si*2+1, delta & 0xffffffff, AX+si*2+1))
            if not opt.get('noread'):
                rd = reads(n+1)
                pos = 2
                for i, r in enumerate(rd):
                    fill[pos].append(r)
                    pos += 1 if 'tr' in r else 2
        else:
            for u in range(2):
                fill[u].append("ds_read_b128 v[%d:%d], v%d offset:%d" % (PA+u*4, PA+u*4+3, VP, u*64))
                fill[u].append("ds_read_b128 v[%d:%d], v%d offset:%d" % (PB+u*4, PB+u*4+3, VP, 256 + u*64))
        e("s_waitcnt lgkmcnt(0)")
        for i in range(48):
            e(m[i])
            for f in fill[i]: e(f)
    stamp(3)
    stamp(20, KIND)
    e("s_waitcnt lgkmcnt(0)")
    e("s_nop 7")
    T0 = 112
    for tg in range(4):
        a = ACC + tg*16
        z = T0 + (tg & 1)*40
        ex = z + 16
        o = z + 32
        for p in range(8):
            pp = (p & 3)*2
            e("v_pk_fma_f32 v[%d:%d], v[%d:%d], v[%d:%d], v[%d:%d]" % (z+2*p, z+2*p+1, a+2*p, a+2*p+1, PA+pp, PA+pp+1, PB+pp, PB+pp+1))
        for i in range(16):
            e("v_exp_f32 v%d, v%d" % (ex+i, z+i))
        e("s_nop 0")
        for p in range(8):
            e("v_pk_fma_f32 v[%d:%d], v[%d:%d], s[44:45], s[44:45]" % (ex+2*p, ex+2*p+1, ex+2*p, ex+2*p+1))
        for i in range(16):
            e("v_rcp_f32 v%d, v%d" % (ex+i, ex+i))
        e("s_nop 0")
        for p in range(8):
            e("v_pk_mul_f32 v[%d:%d], v[%d:%d], v[%d:%d]" % (z+2*p, z+2*p+1, z+2*p, z+2*p+1, ex+2*p, ex+2*p+1))
        for p in range(8):
            e("v_cvt_pk_bf16_f32 v%d, v%d, v%d" % (o+p, z+2*p, z+2*p+1))
        e("s_nop 1")
        for tt in range(2):
            e("v_permlane16_swap_b32 v%d, v%d" % (o+4*tt, o+4*tt+2))
            e("v_permlane16_swap_b32 v%d, v%d" % (o+4*tt+1, o+4*tt+3))
        for tt in range(2):
            t = tg*2 + tt
            e("buffer_store_dwordx4 v[%d:%d], v%d, s[32:35], %s offen offset:%d" % (o+4*tt, o+4*tt+3, VO, "s46" if t >= 4 else "0", (t & 3)*896))
    stamp(4)
    if stamps:
        e("s_waitcnt vmcnt(0)")
        stamp(5)
        e("s_branch L_stamp_out")
    e("s_endpgm")

    lab("L_loader")
    e("s_sub_u32 s40, s3, 4")
    VX, VH, VW = 8, 10, 11
    e("v_lshrrev_b32 v1, 3, v0")
    e("v_lshrrev_b32 v2, 4, v0")
    e("v_and_b32 v3, 7, v0")
    e("v_lshlrev_b32 v4, 1, v2")
    e("v_xor_b32 v4, v3, v4")
    e("v_lshlrev_b32 v4, 4, v4")
    e("v_mul_u32_u24 v5, 7168, v1")
    e("v_add_u32 v4, v4, v5")
    e("s_mul_i32 s42, s40, 1792")
    e("s_sub_u32 s42, %d, s42" % (6*896))
    e("s_add_u32 s42, s42, s38")
    e("v_add_u32 v%d, s42, v4" % VX)
    e("v_and_b32 v4, 1, v2")
    e("v_lshlrev_b32 v4, 1, v4")
    e("s_and_b32 s42, s40, 1")
    e("s_lshl_b32 s42, s42, 2")
    e("v_xor_b32 v4, s42, v4")
    e("v_xor_b32 v4, v4, v3")
    e("v_lshlrev_b32 v4, 4, v4")
    e("v_mul_u32_u24 v5, 896, v1")
    e("v_add_u32 v4, v4, v5")
    e("s_mul_i32 s43, s40, 7168")
    e("s_add_u32 s43, s43, s39")
    e("v_add_u32 v%d, s43, v4" % VW)
    e("v_add_u32 v4, s42, v0")
    e("s_and_b32 s43, s36, 7")
    e("s_cmp_lt_u32 s40, 2")
    e("s_cselect_b32 s46, 6, 0")
    e("s_cselect_b32 s47, 0, 7")
    e("s_cselect_b32 s48, 0, %d" % (257*896))
    e("s_cselect_b32 s49, 0, %d" % (257*128))
    e("s_add_u32 s48, s48, s38")
    e("s_sub_u32 s48, s48, 896")
    e("s_cmp_eq_u32 s43, s47")
    e("s_cselect_b32 s48, 0x80000000, s48")
    e("v_xor_b32 v4, s46, v4")
    e("v_lshlrev_b32 v4, 4, v4")
    e("v_add_u32 v%d, s48, v4" % VH)
    e("s_lshl_b32 s42, s42, 4")
    e("s_add_u32 s49, s49, s42")
    e("s_add_u32 s49, s49, %d" % XBASE)
    e("s_lshl_b32 s50, s40, 13")
    e("s_add_u32 s50, s50, %d" % (XBASE + 128))
    e("s_lshl_b32 s51, s40, 10")
    e("s_add_u32 s51, s51, %d" % WBASE)
    e("v_lshlrev_b32 v12, 1, v0")
    e("v_add_u32 v12, s39, v12")
    e("s_waitcnt lgkmcnt(0)")
    e("s_mov_b32 s24, s4")
    e("s_and_b32 s25, s5, 0xffff")
    e("s_mov_b32 s26, %d" % (4*2048*448*2))
    e("s_mov_b32 s27, 0x20000")
    e("s_mov_b32 s28, s6")
    e("s_and_b32 s29, s7, 0xffff")
    e("s_mov_b32 s30, %d" % (3*448*448*2))
    e("s_mov_b32 s31, 0x20000")
    stamp(1)

    issued = []
    nodma = opt.get('nodma')
    def issue_x(s):
        if nodma and s >= 3: return
        b = s % NXB
        for q in range(8):
            e("s_add_u32 m0, s50, %d" % (b*XBUF + q*1024))
            e("s_mov_b32 s52, %d" % (((q & 3)*64 + 1 - (q >> 2))*896 + s*128))
            e("buffer_load_dwordx4 v%d, s[24:27], s52 offen lds" % VX)
            issued.append(('x', s))
        e("s_add_u32 m0, s49, %d" % (b*XBUF))
        e("s_mov_b32 s52, %d" % (s*128))
        e("s_mov_b64 exec, 15")
        e("buffer_load_dwordx4 v%d, s[24:27], s52 offen lds" % VH)
        e("s_mov_b64 exec, -1")
        issued.append(('x', s))
    def issue_w(n):
        if nodma and n >= 5: return
        sl = n % NWS
        for tap in range(3):
            e("s_add_u32 m0, s51, %d" % (sl*WSLOT + tap*4096))
            e("s_mov_b32 s52, %d" % (tap*401408 + n*32*896))
            e("buffer_load_dwordx4 v%d, s[28:31], s52 offen lds" % VW)
            issued.append(('w', n))
    def issue_p():
        e("global_load_ushort v16, v12, s[8:9]")
        e("global_load_ushort v17, v12, s[10:11]")
        e("global_load_ushort v18, v12, s[12:13]")
        e("global_load_ushort v19, v12, s[14:15]")
        for i in range(4): issued.append(('p', 0))
    def params():
        need = [i for i, t in enumerate(issued) if t == ('p', 0)]
        e("s_waitcnt vmcnt(%d)" % (len(issued) - 1 - max(need)))
        for r in (16, 17, 18, 19):
            e("v_lshlrev_b32 v%d, 16, v%d" % (r, r))
        def rnd(r):
            e("v_cvt_pk_bf16_f32 v%d, v%d, v%d" % (r, r, r))
            e("v_lshlrev_b32 v%d, 16, v%d" % (r, r))
        e("v_add_f32 v17, 0x%08x, v17" % f2u(1e-5)); rnd(17)
        e("v_sqrt_f32 v17, v17"); e("s_nop 0"); rnd(17)
        e("v_rcp_f32 v17, v17"); e("s_nop 0"); rnd(17)
        e("v_mul_f32 v17, v18, v17"); rnd(17)
        e("v_fma_f32 v19, -v16, v17, v19")
        e("v_mul_f32 v17, 0x%08x, v17" % f2u(-1.4426950408889634))
        e("v_mul_f32 v19, 0x%08x, v19" % f2u(-1.4426950408889634))
        e("v_lshlrev_b32 v13, 2, v0")
        e("v_add_u32 v13, %d, v13" % PBASE)
        e("ds_write_b32 v13, v17")
        e("ds_write_b32 v13, v19 offset:256")
        e("s_waitcnt lgkmcnt(0)")
    pre = opt.get('pre', 'w0 x0 w1 x1').split()
    post0 = opt.get('post0', 'w2').split()
    post1 = opt.get('post1', 'w3 x2 w4').split()
    def do(lst):
        for t in lst:
            if t[0] == 'w': issue_w(int(t[1:]))
            elif t[0] == 'x': issue_x(int(t[1:]))
    do(pre)
    for n in range(NPH):
        need = [i for i, t in enumerate(issued) if t == ('w', n) or t == ('x', n >> 1)]
        N = len(issued) - 1 - max(need) if need else 63
        e("s_waitcnt vmcnt(%d)" % min(N, 63))
        if n < 4: stamp(2+n)
        stamp(6+n, KIND)
        e("s_barrier")
        if n == 0: do(post0)
        if n == 1: do(post1)
        if n >= 1:
            if n + 4 < NPH: issue_w(n+4)
            if (n-1) & 1 and ((n-1) >> 1) + 3 < 7: issue_x(((n-1) >> 1) + 3)
        if n == 9: issue_p()
        if n == 11: params()
    if stamps:
        lab("L_stamp_out")
        e("s_waitcnt lgkmcnt(0)")
        e("s_lshl_b32 s42, s2, 3")
        e("s_add_u32 s42, s42, s3")
        e("s_lshl_b32 s42, s42, 7")
        e("v_mov_b32 v1, s42")
        for i in range(21):
            e("v_mov_b32 v%d, s%d" % (2+i, 60+2*i))
        e("s_getreg_b32 s43, hwreg(HW_REG_XCC_ID)")
        e("v_mov_b32 v24, s43")
        e("s_getreg_b32 s43, hwreg(HW_REG_HW_ID)")
        e("v_mov_b32 v25, s43")
        e("s_mov_b64 exec, 1")
        for i in range(6):
            e("global_store_dwordx4 v1, v[%d:%d], s[20:21] offset:%d" % (2+4*i, 5+4*i, 16*i))
    lab("L_end")
    e("s_endpgm")
    out += L
    out += ['.section .rodata,"a"', '.p2align 6', '.amdhsa_kernel %s_kernel' % NAME,
            '  .amdhsa_next_free_vgpr 256', '  .amdhsa_next_free_sgpr 102', '  .amdhsa_accum_offset 256',
            '  .amdhsa_group_segment_fixed_size 0', '  .amdhsa_kernarg_size 72', '  .amdhsa_user_sgpr_count 2',
            '  .amdhsa_user_sgpr_kernarg_segment_ptr 1', '  .amdhsa_system_sgpr_workgroup_id_x 1',
            '.end_amdhsa_kernel', '']
    return '\n'.join(out)

if __name__ == '__main__':
    opt = {}
    for a in sys.argv[1:]:
        if a.startswith('--'):
            if '=' in a:
                k, v = a[2:].split('=', 1); opt[k] = v
            else: opt[a[2:]] = True
    path = [a for a in sys.argv[1:] if not a.startswith('--')][0]
    open(path, 'w').write(gen(opt))
```
